```python
import torch

def _softmax(x, axis=-1):
    return torch.softmax(x, dim=axis)
def _gelu(x):
    return torch.nn.functional.gelu(x, approximate="tanh")
def _silu(x):
    return torch.nn.functional.silu(x)
def _sigmoid(x):
    return torch.sigmoid(x)
def _layernorm(x, axis=-1, eps=1e-5):
    m = x.mean(dim=axis, keepdim=True)
    v = x.var(dim=axis, keepdim=True, unbiased=False)
    return (x - m) / torch.sqrt(v + eps)
def _scatter_add(tgt, idx, src, axis=0):
    return tgt.clone().index_add_(axis, idx, src)
def _segment_sum(src, seg, n):
    out = torch.zeros((n,) + src.shape[1:], dtype=src.dtype)
    return out.index_add_(0, seg, src)
def _pad(x, pw):
    flat = tuple(v for pair in reversed(pw) for v in pair)
    return torch.nn.functional.pad(x, flat)

kernel_name = 'gated_mix__ssm_conv_s5__dense_activation_gelu__prompt'

def setup_inputs():

    _w = (lambda a: (lambda t: t.to(torch.bfloat16) if t.is_floating_point() else t)(torch.as_tensor(a)))
    def _A_setup():
        B, S, D = 1, 2048, 448
        P = D
        Lambda_re = -0.5 * (lambda _x: torch.exp(torch.as_tensor(_x)))((lambda *s: torch.randn(*s, dtype=torch.bfloat16) * 0.2)(P))
        Lambda_im = (lambda *s: torch.randn(*s, dtype=torch.bfloat16) * 0.8)(P) * 1.0
        B_re = (lambda *s: torch.randn(*s, dtype=torch.bfloat16) * 0.2)(P, D) * (D ** -0.5)
        B_im = (lambda *s: torch.randn(*s, dtype=torch.bfloat16) * 0.2)(P, D) * (D ** -0.5)
        C_re = (lambda *s: torch.randn(*s, dtype=torch.bfloat16) * 0.2)(D, P) * (P ** -0.5)
        C_im = (lambda *s: torch.randn(*s, dtype=torch.bfloat16) * 0.2)(D, P) * (P ** -0.5)
        log_dt = (lambda *s: torch.randn(*s, dtype=torch.bfloat16) * 0.2)(P) * 0.3 - 2.0
        Dskip = (lambda *s: torch.randn(*s, dtype=torch.bfloat16) * 0.05)(D)
        return {
            "x": _w((lambda *s: torch.randn(*s, dtype=torch.bfloat16) * 0.05)(B, S, D)),
            "Lambda_re": _w(Lambda_re),
            "Lambda_im": _w(Lambda_im),
            "B_re": _w(B_re),
            "B_im": _w(B_im),
            "C_re": _w(C_re),
            "C_im": _w(C_im),
            "log_dt": _w(log_dt),
            "Dskip": _w(Dskip),
        }
    _A_in = _A_setup()

    def _B_setup():
        B, S, D, F = 1, 2048, 448, 1792
        return {
            "x": _w((lambda *s: torch.randn(*s, dtype=torch.bfloat16) * 0.05)(B, S, D)),
            "w1": _w((lambda *s: torch.randn(*s, dtype=torch.bfloat16) * 3.2)(D, F) * (D ** -0.5)),
            "b1": _w((lambda *s: torch.randn(*s, dtype=torch.bfloat16) * 3.2)(F) * 0.01),
            "w2": _w((lambda *s: torch.randn(*s, dtype=torch.bfloat16) * 0.1)(F, D) * (F ** -0.5)),
            "b2": _w((lambda *s: torch.randn(*s, dtype=torch.bfloat16) * 0.2)(D) * 0.01),
        }
    _B_in = _B_setup()

    return {
        "A_x": _A_in["x"],
        "A_Lambda_re": _A_in["Lambda_re"],
        "A_Lambda_im": _A_in["Lambda_im"],
        "A_B_re": _A_in["B_re"],
        "A_B_im": _A_in["B_im"],
        "A_C_re": _A_in["C_re"],
        "A_C_im": _A_in["C_im"],
        "A_log_dt": _A_in["log_dt"],
        "A_Dskip": _A_in["Dskip"],
        "B_x": _B_in["x"],
        "B_w1": _B_in["w1"],
        "B_b1": _B_in["b1"],
        "B_w2": _B_in["w2"],
        "B_b2": _B_in["b2"],
        "gate_w": _w((lambda *s: torch.randn(*s, dtype=torch.bfloat16) * 0.05)(448) * 16.0),
    }

def reference(A_x, A_Lambda_re, A_Lambda_im, A_B_re, A_B_im, A_C_re, A_C_im, A_log_dt, A_Dskip, B_x, B_w1, B_b1, B_w2, B_b2, gate_w):
    def _A_ref(x, Lambda_re, Lambda_im, B_re, B_im, C_re, C_im, log_dt, Dskip):
        Bsz, L, H = x.shape
        Lam = Lambda_re + 1j * Lambda_im
        Bmat = B_re + 1j * B_im
        Cmat = C_re + 1j * C_im
        dt = torch.exp(log_dt)
        Lam_bar = torch.exp(dt * Lam)
        B_bar = ((Lam_bar - 1.0) / Lam)[:, None] * Bmat
        Bu = torch.einsum("bld,pd->blp", x + 0j, B_bar)
        h = torch.zeros_like(Bu[:, 0, :])
        hs = []
        for t in range(L):
            h = Lam_bar[None, :] * h + Bu[:, t, :]
            hs.append(h)
        hseq = torch.stack(hs, 1)
        y = 2.0 * torch.einsum("blp,dp->bld", hseq, Cmat).real + x * Dskip[None, None, :]
        return y

    def _B_ref(x, w1, b1, w2, b2):
        h = torch.einsum("bsd,df->bsf", x, w1) + b1
        h = _gelu(h)
        return torch.einsum("bsf,fd->bsd", h, w2) + b2

    x = A_x
    g = _sigmoid((x * gate_w).sum(-1, keepdims=True))
    a = _A_ref(x, A_Lambda_re, A_Lambda_im, A_B_re, A_B_im, A_C_re, A_C_im, A_log_dt, A_Dskip)
    b = _B_ref(x, B_w1, B_b1, B_w2, B_b2)
    return g * a + (1 - g) * b
```

```python
import re

REG_RE = re.compile(r'^(-?)(abs\()?([vas])(\d+|\[(\d+):(\d+)\])\)?$')


def regs_of(tok):
    tok = tok.strip()
    if tok.startswith('-'):
        tok = tok[1:]
    if tok.startswith('abs(') and tok.endswith(')'):
        tok = tok[4:-1]
    if tok.startswith('|') and tok.endswith('|'):
        tok = tok[1:-1]
    if tok == 'vcc':
        return {('s', 106), ('s', 107)}
    if tok == 'vcc_lo':
        return {('s', 106)}
    if tok == 'vcc_hi':
        return {('s', 107)}
    if tok == 'exec':
        return {('s', 126), ('s', 127)}
    if tok == 'm0':
        return {('s', 124)}
    m = re.match(r'^([vas])(\d+)$', tok)
    if m:
        return {(m.group(1), int(m.group(2)))}
    m = re.match(r'^([vas])\[(\d+):(\d+)\]$', tok)
    if m:
        return {(m.group(1), i) for i in range(int(m.group(2)), int(m.group(3)) + 1)}
    return set()


VCC = {('s', 106), ('s', 107)}
EXEC = {('s', 126), ('s', 127)}
M0 = {('s', 124)}
TRANS = ('v_exp_f32', 'v_log_f32', 'v_rcp_f32', 'v_rsq_f32', 'v_sqrt_f32', 'v_sin_f32', 'v_cos_f32')


class Ins:
    __slots__ = ('text', 'mn', 'ops', 'mods', 'defs', 'uses', 'kind', 'tag', 'need', 'srcc', 'srcab', 'wide')

    def __init__(self, text, tag=None, need=None):
        self.text = text
        self.tag = tag
        self.need = need
        t = text.split(';')[0].strip()
        parts = t.split(None, 1)
        self.mn = parts[0]
        rest = parts[1] if len(parts) > 1 else ''
        toks = [x.strip() for x in re.split(r',(?![^\[]*\])', rest)] if rest else []
        mods = ''
        if toks:
            last = toks[-1].split(None, 1)
            toks[-1] = last[0]
            mods = last[1] if len(last) > 1 else ''
        self.ops = toks
        self.mods = mods
        self.srcc = set()
        self.srcab = set()
        self.wide = False
        mn = self.mn
        R = [regs_of(x) for x in toks]
        allr = lambda xs: set().union(*xs) if xs else set()
        if mn.startswith('v_mfma'):
            self.kind = 'mfma'
            self.defs = R[0]
            self.srcab = R[1] | R[2]
            self.srcc = R[3]
            self.uses = self.srcab | self.srcc
        elif mn.startswith('ds_read'):
            self.kind = 'ds'
            self.defs = R[0]
            self.uses = allr(R[1:])
        elif mn.startswith('ds_write'):
            self.kind = 'ds'
            self.defs = set()
            self.uses = allr(R)
        elif mn.startswith('buffer_load') and re.search(r'\blds\b', mods):
            self.kind = 'vm'
            self.defs = set()
            self.uses = allr(R) | M0
        elif mn.startswith(('buffer_load', 'global_load')):
            self.kind = 'vm'
            self.defs = R[0]
            self.uses = allr(R[1:])
            if 'd16' in mn:
                self.uses |= R[0]
        elif mn.startswith(('buffer_store', 'global_store')):
            self.kind = 'vm'
            self.defs = set()
            self.uses = allr(R)
            self.wide = mn.endswith(('x3', 'x4'))
        elif mn.startswith('v_cmp'):
            self.kind = 'valu'
            self.defs = R[0]
            self.uses = allr(R[1:])
        elif mn.startswith('v_permlane') and 'swap' in mn:
            self.kind = 'valu'
            self.defs = R[0] | R[1]
            self.uses = R[0] | R[1]
        elif mn.startswith(('v_fmac', 'v_dot2c')):
            self.kind = 'valu'
            self.defs = R[0]
            self.uses = allr(R)
        elif mn.startswith('v_'):
            self.kind = 'valu'
            self.defs = R[0]
            self.uses = allr(R[1:])
            if 'dpp' in mn or 'quad_perm' in mods or 'row_' in mods:
                self.uses |= R[0]
        elif mn.startswith(('s_load', 's_memtime', 's_memrealtime')):
            self.kind = 'smem'
            self.defs = R[0]
            self.uses = allr(R[1:])
        elif mn in ('s_waitcnt', 's_barrier', 's_nop', 's_endpgm', 's_setprio', 's_sleep') or mn.startswith(('s_cbranch', 's_branch')):
            self.kind = 'ctl'
            self.defs = set()
            self.uses = set()
            if 'vcc' in mn:
                self.uses = set(VCC)
            if 'exec' in mn:
                self.uses = set(EXEC)
        elif mn.startswith('s_cmp') or mn.startswith('s_bitcmp'):
            self.kind = 'salu'
            self.defs = set()
            self.uses = allr(R)
        elif mn.startswith('s_'):
            self.kind = 'salu'
            self.defs = R[0]
            self.uses = allr(R[1:])
            if 'saveexec' in mn:
                self.defs |= EXEC
                self.uses |= EXEC
            if mn.startswith(('s_addk', 's_mulk')):
                self.uses |= R[0]
        else:
            raise ValueError('unknown instruction ' + text)

    def states(self):
        if self.mn == 's_nop':
            return int(self.ops[0]) + 1
        return 1


class Label:
    def __init__(self, name):
        self.name = name


class Raw:
    def __init__(self, text):
        self.text = text


class Wait:
    def __init__(self, vm=None, lg=None):
        self.vm = vm
        self.lg = lg


class Drained:
    def __init__(self, vm=False, lg=False):
        self.vm = vm
        self.lg = lg


def I(text, tag=None, need=None):
    return Ins(text, tag, need)


def resolve(items):
    out = []
    vm = []
    lg = []
    done_tags = set()

    def emit_wait(nv, nl):
        nonlocal vm, lg
        parts = []
        if nv is not None and nv < len(vm):
            n = min(nv, 63)
            for t in vm[:len(vm) - n]:
                done_tags.add(t[0])
            vm = vm[len(vm) - n:] if n else []
            parts.append(f'vmcnt({n})')
        if nl is not None and nl < len(lg):
            if any(t[2] for t in lg):
                nl = 0
            n = min(nl, 15)
            for t in lg[:len(lg) - n]:
                done_tags.add(t[0])
            lg = lg[len(lg) - n:] if n else []
            parts.append(f'lgkmcnt({n})')
        if parts:
            if out and isinstance(out[-1], Ins) and out[-1].mn == 's_waitcnt' and getattr(out[-1], 'tag', None) == '_auto':
                prev = out.pop().text
                d = dict(re.findall(r'(vmcnt|lgkmcnt)\((\d+)\)', prev))
                for k, v in re.findall(r'(vmcnt|lgkmcnt)\((\d+)\)', ' '.join(parts)):
                    d[k] = str(min(int(v), int(d.get(k, 99))))
                parts = [f'{k}({v})' for k, v in sorted(d.items(), reverse=True)]
            out.append(Ins('s_waitcnt ' + ' '.join(parts), tag='_auto'))

    def after(lst, pred):
        for k in range(len(lst) - 1, -1, -1):
            if pred(lst[k]):
                return len(lst) - 1 - k
        return None

    for it in items:
        if isinstance(it, Wait):
            nv = nl = None
            if it.vm == 'all':
                nv = 0
            elif it.vm is not None:
                tags = set(it.vm if isinstance(it.vm, (list, tuple, set)) else [it.vm])
                for t in tags:
                    assert t in done_tags or any(x[0] == t for x in vm), f'wait on unknown vm tag {t}'
                nv = after(vm, lambda x: x[0] in tags)
            if it.lg == 'all':
                nl = 0
            elif it.lg is not None:
                tags = set(it.lg if isinstance(it.lg, (list, tuple, set)) else [it.lg])
                nl = after(lg, lambda x: x[0] in tags)
            emit_wait(nv, nl)
            continue
        if isinstance(it, Drained):
            if it.vm:
                for t in vm:
                    done_tags.add(t[0])
                vm = []
            if it.lg:
                for t in lg:
                    done_tags.add(t[0])
                lg = []
            continue
        if not isinstance(it, Ins):
            out.append(it)
            continue
        touched = it.uses | it.defs
        nv = after(vm, lambda x: x[1] & touched)
        nl = after(lg, lambda x: x[1] & touched)
        if it.need:
            k = after(lg, lambda x: x[0] in it.need)
            if k is not None:
                nl = k if nl is None else min(nl, k)
        emit_wait(nv, nl)
        if it.mn == 's_waitcnt':
            m = re.search(r'vmcnt\((\d+)\)', it.text)
            if m and int(m.group(1)) < len(vm):
                n = int(m.group(1))
                for t in vm[:len(vm) - n]:
                    done_tags.add(t[0])
                vm = vm[len(vm) - n:] if n else []
            m = re.search(r'lgkmcnt\((\d+)\)', it.text)
            if m and int(m.group(1)) < len(lg):
                n = int(m.group(1))
                for t in lg[:len(lg) - n]:
                    done_tags.add(t[0])
                lg = lg[len(lg) - n:] if n else []
        out.append(it)
        if it.kind == 'vm':
            vm.append((it.tag, it.defs))
            if len(vm) > 63:
                raise ValueError('more than 63 vm ops outstanding at ' + it.text)
        elif it.kind == 'ds':
            lg.append((it.tag, it.defs, False))
        elif it.kind == 'smem':
            lg.append((it.tag, it.defs, True))
    return out


def check_war(items):
    last = {}
    for k, it in enumerate(items):
        if isinstance(it, Ins) and it.kind == 'ds' and it.tag:
            last[it.tag] = k
    for k, it in enumerate(items):
        if isinstance(it, Ins) and it.need:
            for t in it.need:
                assert t in last and last[t] < k, f'DMA {it.text} ({it.tag}) issued before the last read of {t}'


def vregs(s):
    return {r for r in s if r[0] in 'va'}


def sregs(s):
    return {r for r in s if r[0] == 's'}


def need_states(p, c):
    n = 0
    pv = vregs(p.defs)
    ps = sregs(p.defs)
    if p.kind == 'mfma':
        passes16 = '16x16' in p.mn
        big = 8 if passes16 else 12
        if c.kind == 'mfma':
            if p.defs & c.srcab:
                n = max(n, big)
            if p.defs & c.srcc and p.defs != c.srcc:
                n = max(n, 6 if passes16 else 10)
            if p.defs & c.defs and not (p.defs == c.srcc):
                n = max(n, 6 if passes16 else 10)
        elif c.kind in ('valu', 'vm', 'ds'):
            if p.defs & (c.uses | c.defs):
                n = max(n, big)
            if c.kind == 'valu' and (p.srcc & c.defs):
                n = max(n, 3 if passes16 else 7)
    if p.kind == 'valu':
        if c.kind == 'mfma' and pv & c.uses:
            n = max(n, 2)
        if c.kind == 'mfma' and (p.defs & EXEC):
            n = max(n, 4)
        if p.mn.startswith(TRANS) and c.kind == 'valu' and not c.mn.startswith(TRANS) and pv & c.uses:
            n = max(n, 1)
        if c.kind == 'valu' and c.mn.startswith('v_permlane') and pv & c.uses:
            n = max(n, 2)
        if c.kind == 'valu' and ('dpp' in c.mn or 'quad_perm' in c.mods or 'row_' in c.mods) and pv & c.uses:
            n = max(n, 2)
        if c.kind == 'valu' and c.mn.startswith(('v_readfirstlane', 'v_readlane')) and pv & c.uses:
            n = max(n, 1)
        if ps:
            if c.kind == 'vm' and ps & c.uses:
                n = max(n, 5)
            if c.kind == 'valu' and ps & c.uses:
                n = max(n, 2)
            if c.kind in ('salu', 'ctl') and ps & c.uses:
                n = max(n, 4)
        if p.mn.startswith('v_dot2'):
            if c.kind in ('valu', 'vm', 'ds', 'mfma') and pv & (c.uses | c.defs):
                same_c = (c.mn == p.mn and not (pv & (regs_of(c.ops[1]) | regs_of(c.ops[2]))))
                if not same_c:
                    n = max(n, 3)
    if p.kind == 'salu' and (p.defs & M0) and c.kind == 'vm' and (c.uses & M0):
        n = max(n, 1)
    if p.kind == 'salu' and (p.defs & EXEC) and c.kind == 'valu' and ('dpp' in c.mn or c.mn.startswith('v_permlane')):
        n = max(n, 2)
    if p.kind == 'vm' and p.wide and c.kind in ('valu', 'mfma'):
        data = regs_of(p.ops[0]) if p.mn.startswith('buffer') else regs_of(p.ops[1])
        if data & c.defs:
            n = max(n, 2)
    return n


def fix_hazards(items, verbose=False):
    out = []
    hist = []
    added = 0
    for it in items:
        if isinstance(it, Ins):
            dist = 0
            pad = 0
            for p in reversed(hist):
                req = need_states(p, it)
                if req > dist:
                    pad = max(pad, req - dist)
                dist += p.states()
                if dist >= 20:
                    break
            if pad:
                nop = Ins(f's_nop {pad - 1}')
                out.append(nop)
                hist.append(nop)
                added += pad
                if verbose:
                    print('nop', pad, 'before', it.text)
            out.append(it)
            hist.append(it)
            if len(hist) > 40:
                hist = hist[-24:]
        else:
            out.append(it)
    return out, added


def render(items):
    lines = []
    for it in items:
        if isinstance(it, Ins):
            lines.append('    ' + it.text)
        elif isinstance(it, Label):
            lines.append(it.name + ':')
        elif isinstance(it, Raw):
            lines.append(it.text)
    return '\n'.join(lines)


def flatten(x):
    out = []
    for it in x:
        if isinstance(it, (list, tuple)):
            out += flatten(it)
        elif isinstance(it, str):
            out.append(Ins(it))
        elif it is not None:
            out.append(it)
    return out
```

```python
import sys, struct, math
from asmfw import *

NAME = "gated_mix__ssm_conv_s5__dense_activation_gelu__prompt"
KNAME = NAME + "_kernel"

RING0, RSZ, NSLOT = 57344, 24576, 24
HX, hX = 8192, 40960
MISC = RING0 + 4 * RSZ
GATE = MISC
TG, TOMG, TIG, T2G = MISC + 1024, MISC + 1280, MISC + 1536, MISC + 1792
SEG = MISC + 2048
LDS_BYTES = MISC + 4096
SB, FB, PB, DBG = 0x1000, 0x40000, 0x100000, 0x2000000
NONCE_INC = 0x9E3779B9


def f32(x):
    return "0x%08x" % struct.unpack("<I", struct.pack("<f", x))[0]


LOG2E = 1.4426950408889634
GK0 = -2.0 * math.sqrt(2.0 / math.pi) * LOG2E
GK1 = GK0 * 0.044715

sJ, sR, sW, sRING, sTAG = "s3", "s4", "s5", "s6", "s7"
X, BRE, BIM, CRE, CIM, W1, W2, WS, OUT, GT = ("s[8:11]", "s[12:15]", "s[16:19]", "s[20:23]", "s[24:27]",
                                               "s[28:31]", "s[32:35]", "s[36:39]", "s[40:43]", "s[44:47]")
pLRE, pLIM, pLDT, pDSK, pB1, pB2 = "s[48:49]", "s[50:51]", "s[52:53]", "s[54:55]", "s[56:57]", "s[58:59]"
sXO = [f"s{62 + c}" for c in range(7)]
sXB, sBB, sW1B = "s69", "s70", "s71"
sTA, sTB, sTC, sTD = "s72", "s73", "s74", "s75"
sK0, sK1, sONELO, sONEHI = "s76", "s77", "s78", "s79"
CD = "s[80:83]"
sW2S = ["s84", "s85", "s86", "s87"]
sCS = ["s88", "s89", "s90", "s91"]
sPS = ["s92", "s93", "s94"]
mA, mB, mC = "s[96:97]", "s[98:99]", "s[100:101]"
sKK0, sKK1 = "s[60:61]", "s[76:77]"

vL = "v1"
vXa = [4, 5, 6, 7]
vRb = [8, 9, 10, 11]
vT1, vT2 = 12, 13
vXo = [14, 15]
vBo = [16, 17]
vW1o = [18, 19, 20, 21]
vW2o = [22, 23, 24, 25]
vCo = [16, 17, 26, 27]
vL16 = 28
vHw = 29
AR, AI, CR, CI, A16R_, A16I_, A64R, A64I, ARR, ARI, A5R, A5I = range(30, 42)
PR, PI = 42, 43
ER, EI = 44, 45
IG = [46, 47]
FR = 48
BU = 64
ACC = [96, 128]
BRAW = 160
BIAS = 176
T = 192
vLRE, vLIM, vLDT, vDSK, vB2, vE, vDLO, vDHI = range(216, 224)
LB = 224


def v(n, k=1):
    return f"v{n}" if k == 1 else f"v[{n}:{n + k - 1}]"


def a(n, k=4):
    return f"a[{n}:{n + k - 1}]"


class Opt:
    stamps = False
    dump = None
    look1 = 12
    vmgran = 2


def cmul(dr, di, xr, xi, yr, yi, t):
    return [f"v_mul_f32 {v(dr)}, {v(xr)}, {v(yr)}", f"v_mul_f32 {v(di)}, {v(xr)}, {v(yi)}",
            f"v_fma_f32 {v(dr)}, -{v(xi)}, {v(yi)}, {v(dr)}", f"v_fmac_f32 {v(di)}, {v(xi)}, {v(yr)}"]


def cfma(dr, di, xr, xi, yr, yi, zr, zi):
    return [f"v_fma_f32 {v(dr)}, {v(xr)}, {v(yr)}, {v(zr)}", f"v_fma_f32 {v(di)}, {v(xr)}, {v(yi)}, {v(zi)}",
            f"v_fma_f32 {v(dr)}, -{v(xi)}, {v(yi)}, {v(dr)}", f"v_fmac_f32 {v(di)}, {v(xi)}, {v(yr)}"]


def csq(dr, di, xr, xi):
    return [f"v_mul_f32 {v(dr)}, {v(xi)}, {v(xi)}", f"v_add_f32 {v(di)}, {v(xr)}, {v(xr)}",
            f"v_fma_f32 {v(dr)}, {v(xr)}, {v(xr)}, -{v(dr)}", f"v_mul_f32 {v(di)}, {v(di)}, {v(xi)}"]


class Gen:
    def __init__(self, o):
        self.o = o
        self.p = []
        self.nstamp = 0
        self.ool = []

    def e(self, *xs):
        self.p += flatten(xs)

    def stamp(self):
        if not self.o.stamps:
            return []
        n = self.nstamp
        self.nstamp += 1
        return [I("s_memrealtime s[94:95]") if False else I("s_memrealtime vcc"), Wait(lg='all'),
                I(f"v_mov_b32 v2, vcc_lo"), I(f"v_accvgpr_write_b32 a{224 + n}, v2")]

    def dma_ops(self, n):
        pos = (n % NSLOT) * 1024
        k = n % 4
        need = [f"rd{n - NSLOT}"] if n >= NSLOT else None
        if need and n - NSLOT < 28:
            need = [f"rd{(n - NSLOT) // 4 * 4}"]
        ops = []
        tag = f"s{n}"
        if n < 28:
            c = n // 4
            if k == 0:
                ops.append(f"s_add_u32 {sTA}, {sBB}, {sXO[c]}")
            if k % 2 == 0:
                ops.append(f"s_add_u32 m0, {sRING}, {pos}")
            srd = BRE if k < 2 else BIM
            ops.append(I(f"buffer_load_dwordx4 {v(vBo[k % 2])}, {srd}, {sTA} offen offset:{1024 * (k % 2)} lds", tag, need))
        elif n < 84:
            m = n - 28
            p, c = m // 28, (m % 28) // 4
            if k == 0:
                ops.append(f"s_mul_i32 {sTA}, {sXO[c]}, 1792")
                ops.append(f"s_add_u32 m0, {sRING}, {pos}")
                ops.append(f"s_add_u32 {sTA}, {sTA}, {sW1B}")
                if m == 24:
                    pass
            ops.append(I(f"buffer_load_dwordx4 {v(vW1o[k])}, {W1}, {sTA} offen offset:{1024 * k} lds", tag, need))
            if m == 27:
                ops.append(f"s_add_u32 {sW1B}, {sW1B}, 128")
        else:
            m = n - 84
            st, q = (m // 24, m % 24) if m < 72 else (3, m - 72)
            nw2 = 16 if st < 3 else 8
            if q < nw2:
                if k == 0:
                    ops.append(f"s_add_u32 {sTA}, {sW2S[st]}, {(q // 4) * 57344}")
                    ops.append(f"s_add_u32 m0, {sRING}, {pos}")
                    if True:
                        pass
                ops.append(I(f"buffer_load_dwordx4 {v(vW2o[k])}, {W2}, {sTA} offen offset:{1024 * k} lds", tag, need))
            else:
                g = (q - nw2) // 4
                srd = CD if st == 3 else (CRE if g == 0 else CIM)
                if k == 0:
                    ops.append(f"s_add_u32 m0, {sRING}, {pos}")
                ops.append(I(f"buffer_load_dwordx4 {v(vCo[k])}, {srd}, {sCS[st]} offen offset:{1024 * k} lds", tag, need))
        if n >= NSLOT:
            pn = n - NSLOT
            if pn >= 84 and (pn - 84) % 24 >= 16:
                ops[-1].need = [f"rd{pn // 4 * 4}"]
        return flatten(ops)

    def x_ops(self, c):
        return flatten([f"s_add_u32 {sTB}, {sXB}, {sXO[c]}",
                        f"s_add_u32 m0, {sTD}, {8192 * c}",
                        I(f"buffer_load_dwordx4 {v(vXo[0])}, {X}, {sTB} offen lds", f"x{c}"),
                        I(f"buffer_load_dwordx4 {v(vXo[1])}, {X}, {sTB} offen offset:1024 lds", f"x{c}")])

    def prologue(self):
        e = self.e
        e("s_cmp_ge_u32 s2, 256", "s_cbranch_scc1 L_end",
          f"s_and_b32 {sJ}, s2, 7", f"s_cmp_eq_u32 {sJ}, 7", "s_cbranch_scc1 L_end",
          "s_getpc_b64 s[60:61]")
        e(Label("L_pc"))
        for srd, off in ((X, 0), (BRE, 24), (BIM, 32), (W1, 80), (GT, 112), (WS, 136), (CRE, 40), (CIM, 48), (W2, 96), (OUT, 120)):
            n = int(srd[2:srd.index(':')])
            e(f"s_load_dwordx2 s[{n}:{n + 1}], s[0:1], {off}")
        for pr, off in ((pLRE, 8), (pLIM, 16), (pLDT, 56), (pDSK, 64), (pB1, 88), (pB2, 104)):
            e(f"s_load_dwordx2 {pr}, s[0:1], {off}")
        e(f"s_lshr_b32 {sR}, s2, 3")
        e(f"s_lshl_b32 {sTA}, {sR}, 10",
          f"v_lshl_add_u32 v2, v0, 2, {sTA}",
          "v_min_u32 v2, L_codeend-L_pc-4, v2",
          I(f"global_load_dword {v(LB)}, v2, s[60:61]", "pfc"))
        e("v_lshrrev_b32 v3, 6, v0", f"v_and_b32 {vL}, 63, v0",
          f"v_readfirstlane_b32 {sW}, v3")
        for srd, sz in ((X, 1835008), (BRE, 401408), (BIM, 401408), (W1, 1605632), (GT, 896), (WS, 268435456),
                        (CRE, 401408), (CIM, 401408), (W2, 1605632), (OUT, 3670016)):
            n = int(srd[2:srd.index(':')])
            e(f"s_mov_b32 s{n + 2}, {sz}", f"s_mov_b32 s{n + 3}, 0x20000")
        t0, t1, t2, t3 = T, T + 1, T + 2, T + 3
        e(f"v_lshrrev_b32 {v(t2)}, 4, {vL}", f"v_and_b32 {v(t0)}, 7, {vL}",
          f"v_xor_b32 {v(t0)}, {v(t0)}, {v(t2)}", f"v_lshlrev_b32 {v(t0)}, 4, {v(t0)}",
          f"v_lshrrev_b32 {v(t1)}, 3, {vL}",
          f"v_mul_u32_u24 {v(t3)}, 896, {v(t1)}",
          f"v_add_u32 {v(vBo[0])}, {v(t3)}, {v(t0)}",
          f"v_xor_b32 {v(t2)}, 64, {v(t0)}",
          f"v_add_u32 {v(t3)}, {8 * 896 - 1024}, {v(t3)}",
          f"v_add_u32 {v(vBo[1])}, {v(t3)}, {v(t2)}",
          f"v_and_b32 {v(t3)}, 3, {v(t1)}", f"v_and_b32 {v(t1)}, 32, {vL}",
          f"v_add_u32 {v(t3)}, {v(t3)}, {v(t1)}",
          f"v_mul_u32_u24 {v(t3)}, 896, {v(t3)}",
          f"v_add_u32 {v(vXo[0])}, {v(t3)}, {v(t0)}",
          f"v_add_u32 {v(t3)}, {4 * 896 - 1024}, {v(t3)}",
          f"v_add_u32 {v(vXo[1])}, {v(t3)}, {v(t2)}",
          f"v_lshlrev_b32 {v(vL16)}, 4, {vL}")
        e(f"s_lshl_b32 {sXO[0]}, {sJ}, 7")
        for c in range(1, 7):
            e(f"s_add_u32 {sXO[c]}, {sXO[c - 1]}, 128", f"s_cmp_eq_u32 {sXO[c]}, 896",
              f"s_cselect_b32 {sXO[c]}, 0, {sXO[c]}")
        e(f"s_mul_i32 {sXB}, {sR}, 57344", f"s_lshr_b32 {sTA}, {sW}, 1", f"s_and_b32 {sTB}, {sW}, 1",
          f"s_lshl_b32 {sTC}, {sTA}, 1", f"s_add_u32 {sTC}, {sTC}, {sTB}",
          f"s_mul_i32 {sTC}, {sTC}, {8 * 896}", f"s_add_u32 {sXB}, {sXB}, {sTC}",
          f"s_lshl_b32 {sBB}, {sJ}, 2", f"s_add_u32 {sBB}, {sBB}, {sW}", f"s_mul_i32 {sBB}, {sBB}, {16 * 896}",
          f"s_mul_i32 {sRING}, {sW}, {RSZ}", f"s_add_u32 {sRING}, {sRING}, {RING0}",
          f"s_lshl_b32 {sTD}, {sW}, 11",
          f"s_lshl_b32 {sW1B}, {sJ}, 9", f"s_lshl_b32 {sTA}, {sTA}, 8", f"s_add_u32 {sW1B}, {sW1B}, {sTA}",
          f"s_lshl_b32 {sTB}, {sTB}, 6", f"s_add_u32 {sW1B}, {sW1B}, {sTB}")
        e(Wait(lg='all'))
        e(f"s_lshl_b32 {sTA}, {sJ}, 6", f"s_lshl_b32 {sTB}, {sR}, 1", f"s_add_u32 {sTA}, {sTA}, {sTB}",
          f"s_and_b32 {sTB}, {sW}, 1", f"s_add_u32 {sTA}, {sTA}, {sTB}", f"s_mul_i32 {sTA}, {sTA}, 896",
          f"s_cmp_lt_u32 {sW}, 2",
          "s_cselect_b32 s80, s12, s16", "s_cselect_b32 s81, s13, s17", "s_mov_b32 s82, 401408", "s_mov_b32 s83, 0x20000",
          I(f"buffer_load_dwordx4 {v(LB + 4, 4)}, {v(vL16)}, {CD}, {sTA} offen", "pfb"))
        e(self.x_ops(0), self.x_ops(1))
        for n in range(4):
            e(self.dma_ops(n))
        e(f"v_and_b32 {v(t0)}, 15, {vL}", f"s_lshl_b32 {sTA}, {sJ}, 2", f"s_add_u32 {sTA}, {sTA}, {sW}", f"s_lshl_b32 {sTA}, {sTA}, 5",
          f"v_lshl_add_u32 {v(t0)}, {v(t0)}, 1, {sTA}",
          I(f"global_load_ushort {v(vLDT)}, {v(t0)}, {pLDT}", "par"),
          I(f"global_load_ushort {v(vLRE)}, {v(t0)}, {pLRE}", "par"),
          I(f"global_load_ushort {v(vLIM)}, {v(t0)}, {pLIM}", "par"))
        e(f"v_lshrrev_b32 {v(t1)}, 3, {vL}", f"v_add_u32 {v(t1)}, {sJ}, {v(t1)}",
          f"v_subrev_u32 {v(t2)}, 7, {v(t1)}", f"v_min_u32 {v(t1)}, {v(t1)}, {v(t2)}",
          f"v_and_b32 {v(t2)}, 7, {vL}", f"v_lshlrev_b32 {v(t2)}, 4, {v(t2)}",
          f"v_lshl_add_u32 {v(t1)}, {v(t1)}, 7, {v(t2)}",
          f"s_mov_b32 m0, {GATE}", f"v_mov_b32 {v(t2)}, 0",
          I(f"buffer_load_dwordx4 {v(t1)}, {GT}, 0 offen lds", "gate"),
          I(f"buffer_load_dword {v(vE)}, {v(t2)}, {WS}, 0 offen sc1", "par"))
        e(f"v_lshrrev_b32 {v(t1)}, 5, {vL}", f"s_lshl_b32 {sTA}, {sW}, 2", f"v_add_u32 {v(t1)}, {sTA}, {v(t1)}",
          f"v_and_b32 {v(t2)}, 31, {vL}", f"v_lshlrev_b32 {v(t2)}, 4, {v(t2)}",
          f"v_add_u32 {v(t3)}, 2, {v(t1)}", f"v_min_u32 {v(t3)}, 13, {v(t3)}",
          f"v_mul_u32_u24 {v(t1)}, 3584, {v(t1)}", f"v_mul_u32_u24 {v(t3)}, 3584, {v(t3)}",
          f"v_add_u32 {v(t1)}, {v(t1)}, {v(t2)}", f"v_add_u32 {v(t3)}, {v(t3)}, {v(t2)}",
          f"s_mul_i32 {sTA}, {sR}, {14 * 3584}", f"s_lshl_b32 {sTB}, {sJ}, 9", f"s_add_u32 {sTA}, {sTA}, {sTB}",
          I(f"buffer_load_dwordx4 {v(LB + 8, 4)}, {v(t1)}, {W1}, {sTA} offen", "pfw1"),
          I(f"buffer_load_dwordx4 {v(LB + 12, 4)}, {v(t3)}, {W1}, {sTA} offen", "pfw1"))
        for n in range(4, 8):
            e(self.dma_ops(n))
        e(f"v_lshrrev_b32 {v(t1)}, 5, {vL}", f"v_lshl_add_u32 {v(t1)}, {v(t1)}, 3, {sW1B}")
        for p in range(2):
            for g in range(4):
                e(I(f"global_load_dwordx2 {v(BRAW + 8 * p + 2 * g, 2)}, {v(t1)}, {pB1} offset:{128 * p + 16 * g}", "par"))
        e(f"v_and_b32 {v(t1)}, 31, {vL}", f"s_and_b32 {sTA}, {sW}, 1", f"s_lshl_b32 {sTB}, {sJ}, 1", f"s_add_u32 {sTA}, {sTA}, {sTB}",
          f"s_lshl_b32 {sTA}, {sTA}, 6", f"v_lshl_add_u32 {v(t1)}, {v(t1)}, 1, {sTA}",
          I(f"global_load_ushort {v(vDSK)}, {v(t1)}, {pDSK}", "par"),
          I(f"global_load_ushort {v(vB2)}, {v(t1)}, {pB2}", "par"))
        e(f"v_and_b32 {v(t0)}, 31, {vL}", f"v_lshrrev_b32 {v(t1)}, 5, {vL}",
          f"v_bfe_u32 {v(t2)}, {vL}, 1, 3", f"v_xor_b32 {v(t1)}, {v(t1)}, {v(t2)}",
          f"v_lshlrev_b32 {v(t1)}, 4, {v(t1)}", f"v_lshl_add_u32 {v(vXa[0])}, {v(t0)}, 7, {v(t1)}")
        for u in range(1, 4):
            e(f"v_xor_b32 {v(vXa[u])}, {32 * u}, {v(vXa[0])}")
        for u in range(4):
            e(f"v_add_u32 {v(vRb[u])}, {sRING}, {v(vXa[u])}")
        e(f"v_bfe_u32 {v(t0)}, {vL}, 2, 2", f"v_lshlrev_b32 {v(t0)}, 6, {v(t0)}",
          f"v_bfe_u32 {v(t1)}, {vL}, 4, 1", f"v_lshl_add_u32 {v(t0)}, {v(t1)}, 5, {v(t0)}",
          f"v_and_b32 {v(t1)}, 3, {vL}", f"v_lshl_add_u32 {v(t0)}, {v(t1)}, 3, {v(t0)}",
          f"v_add_u32 {v(t0)}, {sRING}, {v(t0)}", f"v_lshrrev_b32 {v(t1)}, 5, {vL}",
          f"v_lshl_add_u32 {v(vT1)}, {v(t1)}, 9, {v(t0)}", f"v_lshl_add_u32 {v(vT2)}, {v(t1)}, 8, {v(t0)}")
        e(f"v_lshrrev_b32 {v(t0)}, 2, {vL}", f"v_and_b32 {v(t1)}, 3, {vL}", f"v_lshlrev_b32 {v(t1)}, 4, {v(t1)}",
          f"v_mul_u32_u24 {v(t2)}, 3584, {v(t0)}", f"v_add_u32 {v(vW1o[0])}, {v(t2)}, {v(t1)}",
          f"v_mul_u32_u24 {v(t2)}, 896, {v(t0)}", f"v_add_u32 {v(vW2o[0])}, {v(t2)}, {v(t1)}")
        for k in range(1, 4):
            e(f"v_add_u32 {v(vW1o[k])}, {k * (57344 - 1024)}, {v(vW1o[0])}",
              f"v_add_u32 {v(vW2o[k])}, {k * (14336 - 1024)}, {v(vW2o[0])}")
        e(f"v_add_u32 {v(vCo[2])}, {16 * 896 - 2048}, {v(vBo[0])}", f"v_add_u32 {v(vCo[3])}, {16 * 896 - 2048}, {v(vBo[1])}")
        e(f"s_lshr_b32 {sTA}, {sW}, 1", f"s_lshl_b32 {sTA}, {sTA}, 14", f"s_and_b32 {sTB}, {sW}, 1", f"s_lshl_b32 {sTB}, {sTB}, 12",
          f"s_add_u32 {sTA}, {sTA}, {sTB}", f"s_add_u32 {sTA}, {sTA}, {HX}", f"v_add_u32 {v(vHw)}, {sTA}, {v(vL16)}")
        e(f"v_lshrrev_b32 {v(t0)}, 2, {vL}", f"v_and_b32 {v(t1)}, 3, {vL}",
          f"v_lshlrev_b32 {v(t2)}, 7, {v(t0)}", f"v_lshl_add_u32 {v(t2)}, {v(t1)}, 5, {v(t2)}",
          f"v_add_u32 {v(T + 20)}, {sTD}, {v(t2)}",
          f"v_lshlrev_b32 {v(t1)}, 1, {v(t1)}", f"v_lshrrev_b32 {v(t0)}, 1, {v(t0)}",
          f"v_xor_b32 {v(t1)}, {v(t1)}, {v(t0)}", f"v_lshlrev_b32 {v(t1)}, 4, {v(t1)}",
          f"v_add_u32 {v(T + 21)}, {GATE}, {v(t1)}", f"v_xor_b32 {v(T + 22)}, 16, {v(T + 21)}",
          f"v_mov_b32 {v(T + 23)}, 0")
        for st in range(4):
            if st < 3:
                e(f"s_lshl_b32 {sTA}, {sJ}, 1", f"s_add_u32 {sTA}, {sTA}, {sW}", f"s_add_u32 {sTA}, {sTA}, {2 + 4 * st}",
                  f"s_cmp_ge_u32 {sTA}, 14", f"s_cselect_b32 {sTB}, 14, 0", f"s_sub_u32 {sTA}, {sTA}, {sTB}",
                  f"s_mul_i32 {sW2S[st]}, {sJ}, {256 * 896}")
                e(f"s_lshr_b32 {sTB}, {sTA}, 1", f"s_mul_i32 {sTC}, {sR}, 7", f"s_add_u32 {sTB}, {sTB}, {sTC}",
                  f"s_mul_i32 {sTB}, {sTB}, 7", f"s_add_u32 {sTB}, {sTB}, {sJ}", f"s_lshl_b32 {sTB}, {sTB}, 1",
                  f"s_and_b32 {sTC}, {sW}, 1", f"s_add_u32 {sTB}, {sTB}, {sTC}",
                  f"s_lshl_b32 {sPS[st]}, {sTB}, 12", f"s_add_u32 {sPS[st]}, {sPS[st]}, {PB}")
            else:
                e(f"s_lshl_b32 {sTA}, {sJ}, 1", f"s_and_b32 {sTB}, {sW}, 1", f"s_add_u32 {sTA}, {sTA}, {sTB}",
                  f"s_lshl_b32 {sTB}, {sJ}, 1", f"s_lshr_b32 {sTC}, {sW}, 1", f"s_add_u32 {sTB}, {sTB}, {sTC}",
                  f"s_mul_i32 {sW2S[st]}, {sTB}, {128 * 896}")
            e(f"s_lshl_b32 {sTB}, {sTA}, 6", f"s_add_u32 {sW2S[st]}, {sW2S[st]}, {sTB}",
              f"s_mul_i32 {sCS[st]}, {sTA}, {32 * 896}", f"s_add_u32 {sCS[st]}, {sCS[st]}, {sXO[0]}")
        e(f"s_mov_b32 {sONELO}, 0x00003f80", f"s_mov_b32 {sONEHI}, 0x3f800000")

    def lam_fill(self):
        t = [T + 4 + i for i in range(12)]
        t = [ACC[1] + i for i in range(16)]
        L = []
        L += [f"v_lshlrev_b32 {v(vLDT)}, 16, {v(vLDT)}", f"v_lshlrev_b32 {v(vLRE)}, 16, {v(vLRE)}", f"v_lshlrev_b32 {v(vLIM)}, 16, {v(vLIM)}",
              f"v_mul_f32 {v(t[0])}, {f32(LOG2E)}, {v(vLDT)}", f"v_exp_f32 {v(t[0])}, {v(t[0])}",
              f"v_readfirstlane_b32 {sTAG}, {v(vE)}",
              f"v_cvt_pk_bf16_f32 {v(t[0])}, {v(t[0])}, {v(t[0])}", f"v_lshlrev_b32 {v(t[0])}, 16, {v(t[0])}",
              f"v_mul_f32 {v(t[1])}, {v(t[0])}, {v(vLRE)}", f"v_mul_f32 {v(t[2])}, {v(t[0])}, {v(vLIM)}",
              f"v_mul_f32 {v(t[1])}, {f32(LOG2E)}, {v(t[1])}", f"v_mul_f32 {v(t[2])}, 0.15915494, {v(t[2])}",
              f"v_exp_f32 {v(t[1])}, {v(t[1])}", f"v_fract_f32 {v(t[2])}, {v(t[2])}",
              f"v_cos_f32 {v(t[3])}, {v(t[2])}", f"v_sin_f32 {v(t[4])}, {v(t[2])}",
              f"s_add_u32 {sTAG}, {sTAG}, {NONCE_INC}",
              f"v_mul_f32 {v(AR)}, {v(t[1])}, {v(t[3])}", f"v_mul_f32 {v(AI)}, {v(t[1])}, {v(t[4])}",
              f"v_mul_f32 {v(t[0])}, {v(vLRE)}, {v(vLRE)}", f"v_fmac_f32 {v(t[0])}, {v(vLIM)}, {v(vLIM)}",
              f"v_rcp_f32 {v(t[0])}, {v(t[0])}", f"v_add_f32 {v(t[1])}, -1.0, {v(AR)}",
              f"v_mul_f32 {v(CR)}, {v(t[1])}, {v(vLRE)}", f"v_mul_f32 {v(CI)}, {v(AI)}, {v(vLRE)}",
              f"v_fmac_f32 {v(CR)}, {v(AI)}, {v(vLIM)}", f"v_fma_f32 {v(CI)}, -{v(t[1])}, {v(vLIM)}, {v(CI)}",
              f"v_mul_f32 {v(CR)}, {v(CR)}, {v(t[0])}", f"v_mul_f32 {v(CI)}, {v(CI)}, {v(t[0])}"]
        L += csq(t[0], t[1], AR, AI) + csq(t[2], t[3], t[0], t[1]) + csq(t[0], t[1], t[2], t[3]) + csq(A16R_, A16I_, t[0], t[1])
        L += csq(t[4], t[5], A16R_, A16I_)
        L += csq(A64R, A64I, t[4], t[5])
        L += cmul(t[6], t[7], t[4], t[5], A16R_, A16I_, None)
        L += csq(t[0], t[1], A64R, A64I) + csq(t[2], t[3], t[0], t[1]) + csq(t[8], t[9], t[2], t[3])
        L += csq(t[10], t[11], t[8], t[9])
        L += cmul(t[12], t[13], t[10], t[11], t[8], t[9], None)
        L += [f"s_mov_b32 s96, 0xffff0000", "s_mov_b32 s97, 0", "s_mov_b32 s98, 0", "s_mov_b32 s99, 0x0000ffff",
              "s_mov_b32 s100, 0", "s_mov_b32 s101, 0xffff0000"]
        for (dr, di, srcs) in ((ARR, ARI, ((A16R_, A16I_), (t[4], t[5]), (t[6], t[7]))),
                               (A5R, A5I, ((t[8], t[9]), (t[10], t[11]), (t[12], t[13])))):
            L += [f"v_cndmask_b32 {v(dr)}, 1.0, {v(srcs[0][0])}, {mA}", f"v_cndmask_b32 {v(di)}, 0, {v(srcs[0][1])}, {mA}",
                  f"v_cndmask_b32 {v(dr)}, {v(dr)}, {v(srcs[1][0])}, {mB}", f"v_cndmask_b32 {v(di)}, {v(di)}, {v(srcs[1][1])}, {mB}",
                  f"v_cndmask_b32 {v(dr)}, {v(dr)}, {v(srcs[2][0])}, {mC}", f"v_cndmask_b32 {v(di)}, {v(di)}, {v(srcs[2][1])}, {mC}"]
        L += [f"v_lshlrev_b32 {v(vB2)}, 16, {v(vB2)}", f"v_mov_b32 {v(vDLO)}, {v(vDSK)}", f"v_lshlrev_b32 {v(vDHI)}, 16, {v(vDSK)}"]
        return flatten(L)

    def bias_fill(self, p):
        L = []
        for m in range(8):
            L += [f"v_lshlrev_b32 {v(BIAS + 2 * m)}, 16, {v(BRAW + 8 * p + m)}",
                  f"v_and_b32 {v(BIAS + 2 * m + 1)}, 0xffff0000, {v(BRAW + 8 * p + m)}"]
        return flatten(L)

    def gdot_fill(self, c):
        xr, gr = T + 4, T + 12
        L = [I(f"ds_read_b128 {v(xr, 4)}, {v(T + 20)} offset:{8192 * c}"), I(f"ds_read_b128 {v(gr, 4)}, {v(T + 21)} offset:{128 * c}"),
             I(f"ds_read_b128 {v(xr + 4, 4)}, {v(T + 20)} offset:{8192 * c + 16}"), I(f"ds_read_b128 {v(gr + 4, 4)}, {v(T + 22)} offset:{128 * c}")]
        D = [f"v_dot2_f32_bf16 {v(T + 23)}, {v(xr + q)}, {v(gr + q)}, {v(T + 23)}" for q in range(8)]
        return flatten(L), flatten(D)

    def gfinish(self):
        z, t0, t1, t2, t3 = T + 23, T, T + 1, T + 2, T + 3
        L = [f"v_add_f32_dpp {v(z)}, {v(z)}, {v(z)} quad_perm:[1,0,3,2] row_mask:0xf bank_mask:0xf",
             f"v_bfe_u32 {v(t0)}, {vL}, 4, 1", f"v_lshlrev_b32 {v(t0)}, 5, {v(t0)}",
             f"v_add_f32_dpp {v(z)}, {v(z)}, {v(z)} quad_perm:[2,3,0,1] row_mask:0xf bank_mask:0xf",
             f"v_lshrrev_b32 {v(t1)}, 5, {vL}", f"v_lshl_add_u32 {v(t0)}, {v(t1)}, 2, {v(t0)}",
             f"v_cvt_pk_bf16_f32 {v(z)}, {v(z)}, {v(z)}",
             f"v_bfe_u32 {v(t1)}, {vL}, 2, 2", f"v_add_u32 {v(t0)}, {v(t0)}, {v(t1)}",
             f"v_lshlrev_b32 {v(z)}, 16, {v(z)}",
             f"s_lshl_b32 {sTC}, {sW}, 3", f"v_add_u32 {v(t0)}, {sTC}, {v(t0)}",
             f"v_mul_f32 {v(z)}, {f32(-LOG2E)}, {v(z)}",
             f"v_and_b32 {v(t1)}, 3, {vL}", f"v_lshlrev_b32 {v(t1)}, 8, {v(t1)}",
             f"v_exp_f32 {v(z)}, {v(z)}",
             f"v_lshl_add_u32 {v(t0)}, {v(t0)}, 2, {v(t1)}", f"v_add_u32 {v(t0)}, {TG}, {v(t0)}",
             f"v_add_f32 {v(z)}, 1.0, {v(z)}", f"v_rcp_f32 {v(z)}, {v(z)}",
             "s_mov_b32 vcc_lo, 0x22222222", "s_mov_b32 vcc_hi, 0x22222222",
             f"v_cvt_pk_bf16_f32 {v(z)}, {v(z)}, {v(z)}", f"v_lshlrev_b32 {v(z)}, 16, {v(z)}",
             f"v_sub_f32 {v(t1)}, 1.0, {v(z)}", f"v_cvt_pk_bf16_f32 {v(t1)}, {v(t1)}, {v(t1)}", f"v_lshlrev_b32 {v(t1)}, 16, {v(t1)}",
             f"v_max_f32 {v(t2)}, {f32(1e-30)}, {v(t1)}", f"v_rcp_f32 {v(t2)}, {v(t2)}",
             f"v_add_f32 {v(t3)}, {v(z)}, {v(z)}",
             f"v_cndmask_b32 {v(z)}, {v(z)}, {v(t1)}, vcc",
             "s_mov_b32 vcc_lo, 0x44444444", "s_mov_b32 vcc_hi, 0x44444444",
             f"v_cndmask_b32 {v(z)}, {v(z)}, {v(t2)}, vcc",
             "s_mov_b32 vcc_lo, 0x88888888", "s_mov_b32 vcc_hi, 0x88888888",
             f"v_cndmask_b32 {v(z)}, {v(z)}, {v(t3)}, vcc",
             I(f"ds_write_b32 {v(t0)}, {v(z)}", "gw")]
        return flatten(L)

    def scan1_fill(self):
        RE = lambda q: BU + q
        IM = lambda q: BU + 16 + q
        t = [T + i for i in range(20)]
        L = []
        for q in range(16):
            L.append(f"v_permlane16_swap_b32 {v(RE(q))}, {v(IM(q))}")
        for q in range(16):
            tt = t[q % 2]
            L += [f"v_mul_f32 {v(tt)}, {v(RE(q))}, {v(CI)}", f"v_mul_f32 {v(RE(q))}, {v(RE(q))}, {v(CR)}",
                  f"v_fma_f32 {v(RE(q))}, -{v(IM(q))}, {v(CI)}, {v(RE(q))}", f"v_fma_f32 {v(IM(q))}, {v(IM(q))}, {v(CR)}, {v(tt)}"]
            if q == 1:
                L += cfma(t[2], t[3], RE(0), IM(0), AR, AI, RE(1), IM(1))
            elif q > 1:
                s0, s1 = (t[2], t[3]) if q % 2 == 0 else (t[4], t[5])
                d0, d1 = (t[4], t[5]) if q % 2 == 0 else (t[2], t[3])
                if q == 15:
                    d0, d1 = ER, EI
                L += cfma(d0, d1, s0, s1, AR, AI, RE(q), IM(q))
        L += [f"s_lshl_b32 {sTC}, {sW}, 9", f"s_add_u32 {sTC}, {sTC}, {SEG}",
              f"v_lshl_add_u32 {v(t[0])}, {vL}, 3, {sTC}", f"v_and_b32 {v(t[1])}, 15, {vL}",
              I(f"ds_write_b64 {v(t[0])}, {v(ER, 2)}"),
              f"v_lshl_add_u32 {v(t[1])}, {v(t[1])}, 3, {sTC}"]
        for R in range(4):
            L.append(I(f"ds_read_b64 {v(t[4 + 2 * R], 2)}, {v(t[1])} offset:{128 * R}"))
        L += [f"s_lshl_b32 {sTC}, {sJ}, 2", f"s_add_u32 {sTC}, {sTC}, {sW}", f"s_lshl_b32 {sTC}, {sTC}, 5",
              f"s_add_u32 {sTC}, {sTC}, {sR}", f"s_lshl_b32 {sTC}, {sTC}, 8", f"s_add_u32 {sTC}, {sTC}, {SB}",
              f"v_lshrrev_b32 {v(t[0])}, 4, {vL}", f"v_lshlrev_b32 {v(t[0])}, 29, {v(t[0])}", f"v_add_u32 {v(t[0])}, {v(t[0])}, {v(vL16)}",
              f"v_mov_b32 {v(t[18])}, {sTAG}", f"v_mov_b32 {v(t[19])}, {sTAG}"]
        e0, e1, e2, e3 = (t[4], t[5]), (t[6], t[7]), (t[8], t[9]), (t[10], t[11])
        L += cfma(t[12], t[13], *e0, A16R_, A16I_, *e1)
        L += cfma(t[14], t[15], t[12], t[13], A16R_, A16I_, *e2)
        L += cfma(t[16], t[17], t[14], t[15], A16R_, A16I_, *e3)
        L += [I(f"buffer_store_dwordx4 {v(t[16], 4)}, {v(t[0])}, {WS}, {sTC} offen sc1", "spub")]
        L += [f"v_cndmask_b32 {v(PR)}, 0, {v(e0[0])}, {mA}", f"v_cndmask_b32 {v(PI)}, 0, {v(e0[1])}, {mA}",
              f"v_cndmask_b32 {v(PR)}, {v(PR)}, {v(t[12])}, {mB}", f"v_cndmask_b32 {v(PI)}, {v(PI)}, {v(t[13])}, {mB}",
              f"v_cndmask_b32 {v(PR)}, {v(PR)}, {v(t[14])}, {mC}", f"v_cndmask_b32 {v(PI)}, {v(PI)}, {v(t[15])}, {mC}"]
        return flatten(L)

    def pf2_fill(self):
        t0, t1 = T + 20, T + 21
        L = [
            f"s_lshl_b32 {sTC}, {sJ}, 5", f"s_add_u32 {sTC}, {sTC}, {sR}", f"s_lshl_b32 {sTC}, {sTC}, 2", f"s_add_u32 {sTC}, {sTC}, {sW}",
            f"s_mul_i32 {sTC}, {sTC}, 1792",
            I(f"buffer_load_dwordx4 {v(LB + 16, 4)}, {v(vL16)}, {W2}, {sTC} offen", "pf2"),
            I(f"buffer_load_dwordx4 {v(LB + 20, 4)}, {v(vL16)}, {W2}, {sTC} offen offset:768", "pf2"),
            f"v_lshrrev_b32 {v(t0)}, 3, {vL}", f"s_and_b32 {sTC}, {sW}, 1", f"s_mul_i32 {sTC}, {sTC}, 6",
            f"v_add_u32 {v(t0)}, {sTC}, {v(t0)}", f"v_mul_u32_u24 {v(t0)}, 896, {v(t0)}",
            f"v_and_b32 {v(t1)}, 7, {vL}", f"v_lshl_add_u32 {v(t0)}, {v(t1)}, 4, {v(t0)}",
            f"s_mul_i32 {sTC}, {sR}, {14 * 896}", f"s_add_u32 {sTC}, {sTC}, {sXO[0]}",
            [f"s_cmp_lt_u32 {sW}, 2", "s_cselect_b32 s80, s20, s24", "s_cselect_b32 s81, s21, s25"],
            I(f"buffer_load_dwordx4 {v(LB + 24, 4)}, {v(t0)}, {CD}, {sTC} offen", "pf2")]
        return L

    def ig_fill(self):
        t0, t1 = T + 20, T + 21
        return flatten([f"v_bfe_u32 {v(t0)}, {vL}, 2, 1", f"v_lshlrev_b32 {v(t0)}, 5, {v(t0)}",
                        f"v_bfe_u32 {v(t1)}, {vL}, 3, 2", f"v_lshl_add_u32 {v(t0)}, {v(t1)}, 2, {v(t0)}",
                        f"v_and_b32 {v(t1)}, 3, {vL}", f"v_add_u32 {v(t0)}, {v(t0)}, {v(t1)}",
                        f"v_lshlrev_b32 {v(t0)}, 2, {v(t0)}", f"v_add_u32 {v(t0)}, {TIG}, {v(t0)}",
                        I(f"ds_read_b32 {v(IG[0])}, {v(t0)} offset:0"), I(f"ds_read_b32 {v(IG[1])}, {v(t0)} offset:64"),
                        f"s_mov_b32 {sK0}, {f32(GK0)}", f"s_mov_b32 {sK1}, {f32(GK1)}",
                        f"v_mov_b32 {v(ER)}, {sK0}"])

    def gelu_scalar(self, acc, p):
        L = []
        t = [T + i for i in range(16)]
        for i in range(2):
            for u in range(2):
                pk = t[8 + 4 * ((2 * i + u) % 2):][:4]
                for m in range(4):
                    q0 = acc + 16 * i + 8 * u + 2 * m
                    x0, x1 = q0, q0 + 1
                    a0, a1 = t[(2 * m) % 4], t[(2 * m) % 4 + 1]
                    L += [f"v_mul_f32 {v(a0)}, {v(x0)}, {v(x0)}", f"v_mul_f32 {v(a1)}, {v(x1)}, {v(x1)}",
                          f"v_fma_f32 {v(a0)}, {v(a0)}, {sK1}, {v(ER)}", f"v_fma_f32 {v(a1)}, {v(a1)}, {sK1}, {v(ER)}",
                          f"v_mul_f32 {v(a0)}, {v(a0)}, {v(x0)}", f"v_mul_f32 {v(a1)}, {v(a1)}, {v(x1)}",
                          f"v_exp_f32 {v(a0)}, {v(a0)}", f"v_exp_f32 {v(a1)}, {v(a1)}",
                          f"v_fma_f32 {v(a0)}, {v(a0)}, {v(IG[i])}, {v(IG[i])}", f"v_fma_f32 {v(a1)}, {v(a1)}, {v(IG[i])}, {v(IG[i])}",
                          f"v_rcp_f32 {v(a0)}, {v(a0)}", f"v_rcp_f32 {v(a1)}, {v(a1)}",
                          f"v_mul_f32 {v(a0)}, {v(a0)}, {v(x0)}", f"v_mul_f32 {v(a1)}, {v(a1)}, {v(x1)}",
                          f"v_cvt_pk_bf16_f32 {v(pk[m])}, {v(a0)}, {v(a1)}"]
                L.append(I(f"ds_write_b128 {v(vHw)}, {v(pk[0], 4)} offset:{(4 * p + u) * 2048 + 1024 * i}", "hw"))
        return flatten(L)

    def gelu_packed(self, acc, p):
        L = []
        t = [T + i for i in range(24)]
        K0, K1 = t[16], t[18]
        L += [f"v_mov_b32 {v(K0)}, {sK0}", f"v_mov_b32 {v(K1)}, {sK1}"]
        for i in range(2):
            for u in range(2):
                pk = t[8 + 4 * ((2 * i + u) % 2):][:4]
                x = [acc + 16 * i + 8 * u + 2 * m for m in range(4)]
                w = [t[2 * m] for m in range(4)]
                for m in range(4):
                    L.append(f"v_pk_mul_f32 {v(w[m], 2)}, {v(x[m], 2)}, {v(x[m], 2)}")
                for m in range(4):
                    L.append(f"v_pk_fma_f32 {v(w[m], 2)}, {v(w[m], 2)}, {v(K1, 2)}, {v(K0, 2)} op_sel_hi:[1,0,0]")
                for m in range(4):
                    L.append(f"v_pk_mul_f32 {v(w[m], 2)}, {v(w[m], 2)}, {v(x[m], 2)}")
                for m in range(8):
                    L.append(f"v_exp_f32 {v(t[m])}, {v(t[m])}")
                ig = IG[0]
                sel = "op_sel:[0,0,0] op_sel_hi:[1,0,0]" if i == 0 else "op_sel:[0,1,1] op_sel_hi:[1,1,1]"
                for m in range(4):
                    L.append(f"v_pk_fma_f32 {v(w[m], 2)}, {v(w[m], 2)}, {v(ig, 2)}, {v(ig, 2)} {sel}")
                for m in range(8):
                    L.append(f"v_rcp_f32 {v(t[m])}, {v(t[m])}")
                for m in range(4):
                    L.append(f"v_pk_mul_f32 {v(w[m], 2)}, {v(w[m], 2)}, {v(x[m], 2)}")
                for m in range(4):
                    L.append(f"v_cvt_pk_bf16_f32 {v(pk[m])}, {v(w[m])}, {v(w[m] + 1)}")
                L.append(I(f"ds_write_b128 {v(vHw)}, {v(pk[0], 4)} offset:{(4 * p + u) * 2048 + 1024 * i}", "hw"))
        return flatten(L)

    def lookback_addr(self):
        t0, t1 = T + 20, T + 21
        L = [f"v_lshrrev_b32 {v(t0)}, 4, {vL}", f"v_lshlrev_b32 {v(t0)}, 3, {v(t0)}",
             f"s_sub_u32 {sTC}, {sR}, 1", f"v_sub_u32 {v(t0)}, {sTC}, {v(t0)}",
             f"v_and_b32 {v(t1)}, 15, {vL}", f"v_lshlrev_b32 {v(t1)}, 4, {v(t1)}",
             f"v_lshl_add_u32 {v(t0)}, {v(t0)}, 8, {v(t1)}"]
        for m in range(8):
            L += [f"v_subrev_u32 {v(BRAW + m)}, {256 * m}, {v(t0)}", f"v_min_u32 {v(BRAW + m)}, 0x7ff00000, {v(BRAW + m)}"]
        L += [f"s_lshl_b32 s95, {sJ}, 2", f"s_add_u32 s95, s95, {sW}", "s_lshl_b32 s95, s95, 13", f"s_add_u32 s95, s95, {SB}"]
        return flatten(L)

    def lookback_loads(self):
        return [I(f"buffer_load_dwordx4 {v(LB + 4 * m, 4)}, {v(BRAW + m)}, {WS}, s95 offen sc1", "lb") for m in range(8)]

    def lookback_check(self):
        e = self.e
        t0 = T + 20
        e("s_mov_b32 s60, 0", Label("L_lb_check"))
        chk = []
        chk += [f"v_mov_b32 {v(t0)}, 0"]
        for m in range(8):
            chk += [f"v_cmp_gt_u32 vcc, 0x7ff00000, {v(BRAW + m)}",
                    f"v_xor_b32 {v(t0 + 1)}, {sTAG}, {v(LB + 4 * m + 2)}",
                    f"v_xor_b32 {v(t0 + 2)}, {sTAG}, {v(LB + 4 * m + 3)}",
                    f"v_or_b32 {v(t0 + 1)}, {v(t0 + 1)}, {v(t0 + 2)}",
                    f"v_cndmask_b32 {v(t0 + 1)}, 0, {v(t0 + 1)}, vcc",
                    f"v_or_b32 {v(t0)}, {v(t0)}, {v(t0 + 1)}"]
        e(chk, f"v_cmp_ne_u32 vcc, 0, {v(t0)}", "s_cbranch_vccnz L_lb_retry")
        e(Label("L_lb_ok"))
        self.ool += ["L_lb_retry:", "    s_add_u32 s60, s60, 1", "    s_cmp_gt_u32 s60, 0x8000", "    s_cbranch_scc1 L_lb_ok"]
        self.ool += ["    " + x.text for x in self.lookback_loads()] + ["    s_waitcnt vmcnt(0)", "    s_branch L_lb_check"]

    def carry_scan2(self):
        RE = lambda q: BU + q
        IM = lambda q: BU + 16 + q
        t = [T + i for i in range(24)]
        G2 = BIAS
        L = [f"v_lshrrev_b32 {v(t[0])}, 4, {vL}", f"v_lshlrev_b32 {v(t[0])}, 6, {v(t[0])}", f"v_add_u32 {v(t[0])}, {T2G}, {v(t[0])}"]
        for m in range(4):
            L.append(I(f"ds_read_b128 {v(G2 + 4 * m, 4)}, {v(t[0])} offset:{16 * m}"))
        for m in range(6, -1, -1):
            L += cfma(LB + 4 * m, LB + 4 * m + 1, LB + 4 * m + 4, LB + 4 * m + 5, A64R, A64I, LB + 4 * m, LB + 4 * m + 1)
        L += cmul(t[2], t[3], LB, LB + 1, A5R, A5I, None)
        for sw in ("v_permlane16_swap_b32", "v_permlane32_swap_b32"):
            L += [f"v_mov_b32 {v(t[4])}, {v(t[2])}", f"v_mov_b32 {v(t[5])}, {v(t[3])}",
                  f"{sw} {v(t[2])}, {v(t[4])}", f"{sw} {v(t[3])}, {v(t[5])}",
                  f"v_add_f32 {v(t[2])}, {v(t[2])}, {v(t[4])}", f"v_add_f32 {v(t[3])}, {v(t[3])}, {v(t[5])}"]
        L += cfma(PR, PI, t[2], t[3], ARR, ARI, PR, PI)
        L += [f"v_lshrrev_b32 {v(t[0])}, 4, {vL}", f"v_lshlrev_b32 {v(t[0])}, 1, {v(t[0])}", f"v_and_b32 {v(t[1])}, 7, {vL}",
              f"v_xor_b32 {v(t[0])}, {v(t[0])}, {v(t[1])}", f"v_lshlrev_b32 {v(t[0])}, 4, {v(t[0])}",
              f"v_and_b32 {v(t[1])}, 15, {vL}", f"v_lshl_add_u32 {v(t[0])}, {v(t[1])}, 7, {v(t[0])}",
              f"s_lshl_b32 {sTC}, {sW}, 12", f"s_add_u32 {sTC}, {sTC}, {hX}",
              f"v_add_u32 {v(t[0])}, {sTC}, {v(t[0])}", f"v_xor_b32 {v(t[1])}, 16, {v(t[0])}"]
        for q in range(16):
            pr, pi = (PR, PI) if q == 0 else (RE(q - 1), IM(q - 1))
            L += cfma(RE(q), IM(q), pr, pi, AR, AI, RE(q), IM(q))
        PKr, PKi = t[8], t[16]
        for m in range(8):
            L += [f"v_pk_mul_f32 {v(t[4], 2)}, {v(RE(2 * m), 2)}, {v(G2 + 2 * m, 2)}",
                  f"v_pk_mul_f32 {v(t[6], 2)}, {v(IM(2 * m), 2)}, {v(G2 + 2 * m, 2)} neg_lo:[1,0] neg_hi:[1,0]",
                  f"v_cvt_pk_bf16_f32 {v(PKr + m)}, {v(t[4])}, {v(t[5])}",
                  f"v_cvt_pk_bf16_f32 {v(PKi + m)}, {v(t[6])}, {v(t[7])}"]
            if m % 4 == 3:
                ee = m // 4
                L += [I(f"ds_write_b128 {v(t[ee])}, {v(PKr + 4 * ee, 4)}", "hw"),
                      I(f"ds_write_b128 {v(t[ee])}, {v(PKi + 4 * ee, 4)} offset:2048", "hw")]
        return flatten(L)

    def epi_fill(self):
        t = [T + i for i in range(24)]
        G, OM, XP = t[0], LB, LB + 16
        a0, a1, a2 = t[16], t[17], t[18]
        L = [f"v_lshrrev_b32 {v(a0)}, 5, {vL}", f"v_lshlrev_b32 {v(a0)}, 7, {v(a0)}",
             f"s_lshr_b32 {sTC}, {sW}, 1", f"s_lshl_b32 {sTC}, {sTC}, 6", f"s_add_u32 {sTC}, {sTC}, {TG}",
             f"v_add_u32 {v(a0)}, {sTC}, {v(a0)}"]
        for m in range(4):
            L += [I(f"ds_read_b128 {v(G + 4 * m, 4)}, {v(a0)} offset:{16 * m}"),
                  I(f"ds_read_b128 {v(OM + 4 * m, 4)}, {v(a0)} offset:{256 + 16 * m}")]
        L += [f"v_bfe_u32 {v(a1)}, {vL}, 4, 1", f"v_lshlrev_b32 {v(a1)}, 1, {v(a1)}", f"v_bfe_u32 {v(a2)}, {vL}, 1, 1",
              f"v_add_u32 {v(a1)}, {v(a1)}, {v(a2)}", f"s_and_b32 {sTC}, {sW}, 1", f"s_lshl_b32 {sTC}, {sTC}, 2",
              f"v_add_u32 {v(a1)}, {sTC}, {v(a1)}",
              f"v_lshrrev_b32 {v(a2)}, 5, {vL}", f"v_lshlrev_b32 {v(a2)}, 1, {v(a2)}", f"v_xor_b32 {v(a1)}, {v(a1)}, {v(a2)}",
              f"v_bfe_u32 {v(a2)}, {vL}, 3, 1", f"v_xor_b32 {v(a1)}, {v(a1)}, {v(a2)}", f"v_lshlrev_b32 {v(a1)}, 4, {v(a1)}",
              f"v_and_b32 {v(a2)}, 1, {vL}", f"v_lshl_add_u32 {v(a1)}, {v(a2)}, 3, {v(a1)}",
              f"v_lshrrev_b32 {v(a2)}, 5, {vL}", f"v_lshl_add_u32 {v(a1)}, {v(a2)}, 9, {v(a1)}",
              f"v_bfe_u32 {v(a2)}, {vL}, 2, 2", f"v_lshl_add_u32 {v(a1)}, {v(a2)}, 7, {v(a1)}",
              f"s_lshr_b32 {sTC}, {sW}, 1", f"s_lshl_b32 {sTC}, {sTC}, 12", f"v_add_u32 {v(a1)}, {sTC}, {v(a1)}",
              f"v_xor_b32 {v(a2)}, 64, {v(a1)}"]
        for gq in range(4):
            L.append(I(f"ds_read_b64_tr_b16 {v(XP + 2 * gq, 2)}, {v(a1 if gq % 2 == 0 else a2)} offset:{1024 * gq}"))
        for q in range(16):
            L.append(f"v_mul_f32 {v(BIAS + q)}, {v(OM + q)}, {v(vB2)}")
        for q in range(16):
            L.append(f"v_dot2_f32_bf16 {v(OM + q)}, {v(XP + q // 2)}, {v(vDLO if q % 2 == 0 else vDHI)}, 0")
        for q in range(16):
            L.append(f"v_fmac_f32 {v(BIAS + q)}, {v(G + q)}, {v(OM + q)}")
        return flatten(L)

    def piece_out(self, st, acc):
        pk = T
        L = []
        for i in range(2):
            for hf in range(2):
                for m in range(4):
                    q = acc + 16 * i + 8 * hf + 2 * m
                    L.append(f"v_cvt_pk_bf16_f32 {v(pk + 8 * i + 4 * hf + m)}, {v(q)}, {v(q + 1)}")
                L.append(I(f"buffer_store_dwordx4 {v(pk + 8 * i + 4 * hf, 4)}, {v(vL16)}, {WS}, {sPS[st]} offen offset:{2048 * i + 1024 * hf} sc1", f"pc{st}"))
        return flatten(L)

    def merge(self, steps, fill, rate, delay=0):
        fill = list(fill)
        acc = -delay * rate
        n = len(steps)
        for s, (pre, m0, mid, m1, post) in enumerate(steps):
            for (x, m, y) in ((pre, m0, mid), ([], m1, post)):
                self.e(x)
                if m is not None:
                    self.e(m)
                self.e(y)
                acc += rate
                while acc >= 1.0 and fill:
                    self.e([fill.pop(0)])
                    acc -= 1.0
        while fill:
            self.e([fill.pop(0)])

    def frag(self, s):
        return FR + 4 * (s % 4)

    def build(self):
        o = self.o
        e = self.e
        self.prologue()
        e(self.stamp())
        issued = [8]

        def issue_upto(n):
            L = []
            while issued[0] <= min(n, 167):
                L += self.dma_ops(issued[0])
                issued[0] += 1
            return L

        def s1a_reads(s):
            c, u = s // 4, s % 4
            L = []
            if u == 0:
                L += [Wait(vm=[f"x{c}", f"s{4 * c + 3}"] + (["gate"] if c == 0 else [])), "s_barrier"]
            L += [I(f"ds_read_b128 {a(8 * s)}, {v(vXa[u])} offset:{8192 * c}"),
                  I(f"ds_read_b128 {v(self.frag(s), 4)}, {v(vRb[u])} offset:{(4 * c % NSLOT) * 1024}", f"rd{4 * c}"),
                  I(f"ds_read_b128 {a(8 * s + 4)}, {v(vXa[u])} offset:{8192 * c + 4096}")]
            return L

        def tr_reads(n, addr, estep, fr):
            L = []
            if n % o.vmgran == 0 or n in (28, 84):
                L.append(Wait(vm=f"s{min(n + o.vmgran - 1 - n % o.vmgran, issued[0] - 1)}"))
            off = (n % NSLOT) * 1024
            L += [I(f"ds_read_b64_tr_b16 {v(fr, 2)}, {v(addr)} offset:{off}", f"rd{n}"),
                  I(f"ds_read_b64_tr_b16 {v(fr + 2, 2)}, {v(addr)} offset:{off + estep}", f"rd{n}")]
            return L

        e(s1a_reads(0), s1a_reads(1))
        e(self.stamp())
        steps = []
        fills = []
        lam = self.lam_fill() + self.bias_fill(0)
        per = (len(lam) + 19) // 20
        for s in range(28):
            c, u = s // 4, s % 4
            cin0 = "0" if s == 0 else v(BU, 16)
            cin1 = "0" if s == 0 else v(BU + 16, 16)
            m0 = f"v_mfma_f32_32x32x16_bf16 {v(BU, 16)}, {a(8 * s)}, {v(self.frag(s), 4)}, {cin0}"
            m1 = f"v_mfma_f32_32x32x16_bf16 {v(BU + 16, 16)}, {a(8 * s + 4)}, {v(self.frag(s), 4)}, {cin1}"
            mid = []
            post = []
            if s + 2 < 28:
                mid += s1a_reads(s + 2)
            else:
                mid += tr_reads(28 + (s + 2 - 28), vT1, 256, self.frag(s + 2))
            if c + 2 <= 6:
                if u == 0:
                    post += self.x_ops(c + 2)
                post += issue_upto(4 * (c + 2) + u)
            else:
                post += issue_upto(28 + (s - 20) * 2 + 1 if o.look1 >= 12 else 28 + (s - 20))
            rds, dots = self.gdot_fill(c)
            if u == 0:
                mid += rds
            if u >= 1:
                post += dots[(u - 1) * 3:(u - 1) * 3 + 3]
            if s >= 2:
                post += lam[:per]
                lam = lam[per:]
            steps.append(([], m0, mid, m1, post))
        assert not lam
        self.merge(steps, [], 0)
        e(self.gfinish())
        e(Wait(lg='all'), "s_barrier")
        e(self.stamp())

        for p in range(2):
            steps = []
            acc = ACC[p]
            for s in range(28):
                n = 28 + 28 * p + s
                gs = 28 + 28 * p + s
                c0 = v(BIAS, 16) if s == 0 else v(acc, 16)
                c1 = v(BIAS, 16) if s == 0 else v(acc + 16, 16)
                m0 = f"v_mfma_f32_32x32x16_bf16 {v(acc, 16)}, {v(self.frag(gs), 4)}, {a(8 * s)}, {c0}"
                m1 = f"v_mfma_f32_32x32x16_bf16 {v(acc + 16, 16)}, {v(self.frag(gs), 4)}, {a(8 * s + 4)}, {c1}"
                mid = []
                if n + 2 < 84:
                    mid += tr_reads(n + 2, vT1, 256, self.frag(gs + 2))
                post = issue_upto(min(n + o.look1 + 4, issued[0] + 1, n + NSLOT))
                if p == 1 and s == 12:
                    post += self.lookback_loads()
                steps.append(([], m0, mid, m1, post))
            if p == 0:
                fill = self.scan1_fill() + self.pf2_fill() + self.ig_fill() + self.bias_fill(1)
            else:
                fill = self.lookback_addr() + self.gelu_scalar(ACC[0], 0)
            self.merge(steps, fill, len(flatten(fill)) / 54.0 if p == 1 else len(fill) / 52.0)
            e(self.stamp())
        rest = issue_upto(83 + NSLOT)
        self.lookback_check()
        sc = self.carry_scan2()
        ge = self.gelu_packed(ACC[1], 1)
        body = sc + ge
        groups = []
        cur = []
        for x in rest:
            cur.append(x)
            if x.kind == 'vm':
                groups.append(cur)
                cur = []
        stride = max(1, len(body) // (len(groups) + 1))
        for k, x in enumerate(body):
            e([x])
            if groups and k % stride == stride - 1:
                e(groups.pop(0))
        for g in groups:
            e(g)
        t0, t1, hA = T + 20, T + 21, T + 16
        e(f"v_and_b32 {v(t0)}, 1, {vL}", f"v_lshlrev_b32 {v(t0)}, 2, {v(t0)}", f"v_bfe_u32 {v(t1)}, {vL}, 4, 1",
          f"v_add_u32 {v(t0)}, {v(t0)}, {v(t1)}", f"v_bfe_u32 {v(t1)}, {vL}, 2, 2", f"v_xor_b32 {v(t0)}, {v(t0)}, {v(t1)}",
          f"v_lshlrev_b32 {v(t0)}, 4, {v(t0)}", f"v_lshl_add_u32 {v(t0)}, {v(t1)}, 7, {v(t0)}",
          f"v_lshrrev_b32 {v(t1)}, 5, {vL}", f"v_lshl_add_u32 {v(t0)}, {v(t1)}, 10, {v(t0)}",
          f"v_bfe_u32 {v(t1)}, {vL}, 1, 1", f"v_lshl_add_u32 {v(t0)}, {v(t1)}, 3, {v(t0)}",
          f"v_add_u32 {v(hA)}, {hX}, {v(t0)}", f"v_xor_b32 {v(hA + 1)}, 64, {v(hA)}",
          f"v_xor_b32 {v(hA + 2)}, 32, {v(hA)}", f"v_xor_b32 {v(hA + 3)}, 96, {v(hA)}")
        e(Wait(lg='all'), "s_barrier")
        e(self.stamp())

        def opnd_reads(k):
            L = []
            for i in range(2):
                if k < 16:
                    L.append(I(f"ds_read_b128 {a(8 * k + 4 * i)}, {v(vL16)} offset:{HX + 2048 * k + 1024 * i}"))
                else:
                    s_ = k - 16
                    off = (s_ & 3) * 4096 + (s_ >> 2) * 2048
                    L += [I(f"ds_read_b64_tr_b16 {a(8 * k + 4 * i, 2)}, {v(hA + 2 * i)} offset:{off}"),
                          I(f"ds_read_b64_tr_b16 {a(8 * k + 4 * i + 2, 2)}, {v(hA + 2 * i + 1)} offset:{off + 512}")]
            return L

        def w_reads(st, k, fr):
            if st < 3:
                n = 84 + 24 * st + k
                if k < 16:
                    return tr_reads(n, vT2, 512, fr)
                g = n // 4 * 4
                L = [Wait(vm=f"s{g + 3}")] if n % 4 == 0 else []
                return L + [I(f"ds_read_b128 {v(fr, 4)}, {v(vRb[n % 4])} offset:{(g % NSLOT) * 1024}", f"rd{g}")]
            if k < 16:
                off = (k // 8) * 2 * RSZ + (k % 8) * 1024
                return [I(f"ds_read_b64_tr_b16 {v(fr, 2)}, {v(vT2)} offset:{off}"),
                        I(f"ds_read_b64_tr_b16 {v(fr + 2, 2)}, {v(vT2)} offset:{off + 512}")]
            off = ((k - 16) // 4) * 2 * RSZ + 8 * 1024
            return [I(f"ds_read_b128 {v(fr, 4)}, {v(vRb[k % 4])} offset:{off}")]

        e(opnd_reads(0), w_reads(0, 0, self.frag(0)), opnd_reads(1), w_reads(0, 1, self.frag(1)), opnd_reads(2))
        for st in range(3):
            steps = []
            acc = ACC[st % 2]
            for k in range(24):
                gs = 24 * st + k
                n = 84 + gs
                c0 = "0" if k == 0 else v(acc, 16)
                c1 = "0" if k == 0 else v(acc + 16, 16)
                m0 = f"v_mfma_f32_32x32x16_bf16 {v(acc, 16)}, {a(8 * k)}, {v(self.frag(gs), 4)}, {c0}"
                m1 = f"v_mfma_f32_32x32x16_bf16 {v(acc + 16, 16)}, {a(8 * k + 4)}, {v(self.frag(gs), 4)}, {c1}"
                mid = []
                if gs + 2 < 72:
                    mid += w_reads((gs + 2) // 24, (gs + 2) % 24, self.frag(gs + 2))
                post = []
                if st == 0 and k + 3 < 24:
                    post += opnd_reads(k + 3)
                free = n if k < 16 else (n // 4 * 4 - 1 if n % 4 != 3 else n)
                post += issue_upto(min(free + NSLOT, issued[0] + 1))
                steps.append(([], m0, mid, m1, post))
            if st == 0:
                fill = []
            elif st == 1:
                fill = self.piece_out(0, ACC[0])
            else:
                fill = self.piece_out(1, ACC[1]) + self.epi_fill()
            self.merge(steps, fill, 3.0, 2)
            e(self.stamp())
        assert issued[0] == 168
        e(f"s_and_b32 {sTC}, {sW}, 1", f"s_mul_i32 {sTC}, {sTC}, {RSZ}", f"s_add_u32 {sTC}, {sTC}, {RING0 + 12 * 1024}",
          f"s_sub_u32 {sTC}, {sTC}, {sRING}", f"v_add_u32 {v(vT2)}, {sTC}, {v(vT2)}")
        for u in range(4):
            e(f"v_add_u32 {v(vRb[u])}, {sTC}, {v(vRb[u])}")
        e(Wait(vm="s167"), "s_barrier")
        accD = ACC[1]
        for variant in range(2):
            pass
        e(w_reads(3, 0, self.frag(0)), w_reads(3, 1, self.frag(1)), w_reads(3, 2, self.frag(2)))
        e(f"s_cmp_lt_u32 {sW}, 2", "s_cbranch_scc0 L_D1")
        fillC = self.piece_out(2, ACC[0])
        save = self.p
        bodies = []
        for i in range(2):
            self.p = []
            steps = []
            for k in range(24):
                cin = v(BIAS, 16) if k == 0 else v(accD, 16)
                m0 = f"v_mfma_f32_32x32x16_bf16 {v(accD, 16)}, {a(8 * k + 4 * i)}, {v(self.frag(k), 4)}, {cin}"
                mid = w_reads(3, k + 3, self.frag(k + 3)) if k + 3 < 24 else []
                steps.append(([], m0, mid, None, []))
            self.merge(steps, self.piece_out(2, ACC[0]), 1.5, 0)
            bodies.append(self.p)
        self.p = save
        self.variant_bodies = bodies
        e(Raw("@@VARIANT"))
        e(self.stamp())
        t = [T + 16 + i for i in range(8)]
        e(f"v_mov_b32 {v(t[0])}, 0x7ff00000")
        for st in range(3):
            e(f"s_sub_u32 {sTC}, {sPS[st]}, {PB}", f"s_lshr_b32 {sTC}, {sTC}, 5", f"s_add_u32 {sTC}, {sTC}, {FB}",
              f"v_writelane_b32 {v(t[0])}, {sTC}, {st}")
        e(f"v_mov_b32 {v(t[1])}, {sTAG}")
        e(Wait(vm='all'))
        e(I(f"buffer_store_dword {v(t[1])}, {v(t[0])}, {WS}, 0 offen sc1", "flag"))
        e(f"s_add_u32 {sTC}, {sJ}, 1", f"v_add_u32 {v(t[2])}, {sTC}, {vL}", f"v_subrev_u32 {v(t[3])}, 7, {v(t[2])}",
          f"v_min_u32 {v(t[2])}, {v(t[2])}, {v(t[3])}", f"v_lshlrev_b32 {v(t[2])}, 8, {v(t[2])}",
          f"v_cmp_gt_u32 vcc, 6, {vL}", f"v_mov_b32 {v(t[3])}, 0x7ff00000",
          f"s_mul_i32 {sTA}, {sR}, 7", f"s_add_u32 {sTA}, {sTA}, {sJ}", f"s_mul_i32 {sTA}, {sTA}, 14",
          f"s_and_b32 {sTB}, {sW}, 1", f"s_add_u32 {sTA}, {sTA}, {sTB}",
          f"v_cndmask_b32 {v(t[2])}, {v(t[3])}, {v(t[2])}, vcc",
          f"s_lshl_b32 {sTB}, {sTA}, 7", f"s_add_u32 {sTB}, {sTB}, {FB}",
          f"s_lshl_b32 {sTA}, {sTA}, 1", f"s_lshr_b32 {sTC}, {sW}, 1", f"s_add_u32 {sTA}, {sTA}, {sTC}",
          f"s_lshl_b32 {sTA}, {sTA}, 11", f"s_add_u32 {sTA}, {sTA}, {PB}")
        e("s_mov_b32 s60, 0", Label("L_poll"))
        e(I(f"buffer_load_dword {v(t[4])}, {v(t[2])}, {WS}, {sTB} offen sc1", "poll"),
          "s_add_u32 s60, s60, 1", "s_cmp_gt_u32 s60, 0x8000", "s_waitcnt vmcnt(0)", "s_cbranch_scc1 L_polled",
          f"v_cmp_ne_u32 vcc, {sTAG}, {v(t[4])}", "s_and_b32 vcc_lo, vcc_lo, 63", "s_cbranch_scc1 L_poll", Label("L_polled"))
        e(self.stamp())
        RP = 208
        for m in range(6):
            e(f"s_lshl_b32 {sTC}, {sXO[m + 1]}, 6", f"s_add_u32 {sTC}, {sTC}, {sTA}",
              I(f"buffer_load_dwordx4 {v(RP + 8 * m, 4)}, {v(vL16)}, {WS}, {sTC} offen sc1", "rp"),
              I(f"buffer_load_dwordx4 {v(RP + 8 * m + 4, 4)}, {v(vL16)}, {WS}, {sTC} offen offset:1024 sc1", "rp"))
        ta = T
        e(f"v_lshrrev_b32 {v(ta)}, 5, {vL}", f"v_mul_u32_u24 {v(ta)}, {32 * 1792}, {v(ta)}",
          f"v_and_b32 {v(ta + 1)}, 31, {vL}", f"v_lshl_add_u32 {v(ta)}, {v(ta + 1)}, 2, {v(ta)}",
          f"s_lshl_b32 {sTA}, {sR}, 2", f"s_lshr_b32 {sTB}, {sW}, 1", f"s_add_u32 {sTA}, {sTA}, {sTB}",
          f"s_mul_i32 {sTA}, {sTA}, {16 * 1792}", f"s_lshl_b32 {sTB}, {sJ}, 1", f"s_and_b32 {sTC}, {sW}, 1",
          f"s_add_u32 {sTB}, {sTB}, {sTC}", f"s_lshl_b32 {sTB}, {sTB}, 7", f"s_add_u32 {sTA}, {sTA}, {sTB}")
        for m in range(6):
            for d in range(8):
                e(f"v_dot2_f32_bf16 {v(accD + 2 * d)}, {v(RP + 8 * m + d)}, {sONELO}, {v(accD + 2 * d)}",
                  f"v_dot2_f32_bf16 {v(accD + 2 * d + 1)}, {v(RP + 8 * m + d)}, {sONEHI}, {v(accD + 2 * d + 1)}")
        for q in range(16):
            e(I(f"buffer_store_dword {v(accD + q)}, {v(ta)}, {OUT}, {sTA} offen offset:{1792 * (q % 2)}", "out"))
            if q % 2 == 1 and q < 15:
                e(f"s_add_u32 {sTA}, {sTA}, 3584")
        e("s_cmp_eq_u32 s2, 248", "s_cbranch_scc0 L_noepoch", f"s_cmp_eq_u32 {sW}, 0", "s_cbranch_scc0 L_noepoch",
          f"v_lshlrev_b32 {v(ta + 1)}, 28, {vL}", f"v_min_u32 {v(ta + 1)}, 0x7ff00000, {v(ta + 1)}",
          f"v_cmp_eq_u32 vcc, 0, {vL}", f"v_mov_b32 {v(ta + 2)}, 0x7ff00000", f"v_mov_b32 {v(ta + 3)}, {sTAG}",
          f"v_cndmask_b32 {v(ta + 1)}, {v(ta + 2)}, {v(ta + 1)}, vcc",
          I(f"buffer_store_dword {v(ta + 3)}, {v(ta + 1)}, {WS}, 0 offen sc1", "ep"))
        e(Label("L_noepoch"))
        if o.stamps:
            e(Wait(vm='all'), self.stamp())
            e(f"s_lshl_b32 {sTA}, s2, 2", f"s_add_u32 {sTA}, {sTA}, {sW}", f"s_lshl_b32 {sTA}, {sTA}, 7", f"s_add_u32 {sTA}, {sTA}, {DBG}",
              f"v_lshlrev_b32 v3, 28, {vL}", "v_min_u32 v3, 0x7ff00000, v3", f"v_cmp_eq_u32 vcc, 0, {vL}", "v_mov_b32 v2, 0x7ff00000",
              "v_cndmask_b32 v3, v2, v3, vcc")
            for n in range(self.nstamp):
                e(f"v_accvgpr_read_b32 v2, a{224 + n}", I(f"buffer_store_dword v2, v3, {WS}, {sTA} offen offset:{4 * n}"), "s_waitcnt vmcnt(0)")
        e(Label("L_end"), "s_endpgm", [Raw(x) for x in self.ool], Label("L_codeend"))

    def finish(self):
        idx = [k for k, it in enumerate(self.p) if isinstance(it, Raw) and it.text == "@@VARIANT"][0]
        head, tail = self.p[:idx], self.p[idx + 1:]
        texts = []
        for i in range(2):
            full = head + [Label("@@B")] + self.variant_bodies[i] + [I("s_nop 0"), Label("@@E")] + tail
            check_war(full)
            r = resolve(full)
            r, added = fix_hazards(r)
            b = [k for k, it in enumerate(r) if isinstance(it, Label) and it.name == "@@B"][0]
            en = [k for k, it in enumerate(r) if isinstance(it, Label) and it.name == "@@E"][0]
            texts.append((r[:b], r[b + 1:en], r[en + 1:], added))
        assert render(texts[0][0]) == render(texts[1][0]) and render(texts[0][2]) == render(texts[1][2])
        body = texts[0][0] + texts[0][1][:-1] + [I("s_branch L_Dend"), Label("L_D1")] + texts[1][1] + [Label("L_Dend")] + texts[0][2]
        self.nops = texts[0][3]
        return body


HEADER = open("cdna_kernels/" + NAME + ".s.ref").read().split("; Override launch")[0]


def generate(o):
    g = Gen(o)
    g.build()
    body = g.finish()
    txt = HEADER + f"; @launch grid=(256,1,1) block=(256,1,1) lds={LDS_BYTES}\n"
    txt += f""".amdgcn_target "amdgcn-amd-amdhsa--gfx950"
.text
.globl {KNAME}
.p2align 8
.type {KNAME},@function
{KNAME}:
"""
    txt += render(body)
    txt += f"""
.section .rodata,"a"
.p2align 6
.amdhsa_kernel {KNAME}
  .amdhsa_next_free_vgpr 512
  .amdhsa_next_free_sgpr 102
  .amdhsa_accum_offset 256
  .amdhsa_group_segment_fixed_size 0
  .amdhsa_kernarg_size 144
  .amdhsa_user_sgpr_count 2
  .amdhsa_user_sgpr_kernarg_segment_ptr 1
  .amdhsa_system_sgpr_workgroup_id_x 1
.end_amdhsa_kernel
"""
    return txt, g


if __name__ == "__main__":
    o = Opt()
    out = "k.s"
    for arg in sys.argv[1:]:
        if "=" in arg:
            k, val = arg.split("=")
            setattr(o, k, eval(val))
        else:
            out = arg
    txt, g = generate(o)
    open(out, "w").write(txt)
    print("wrote", out, "nops", g.nops, "lines", txt.count("\n"))
```
